```python
import torch

def _softmax(x, axis=-1):
    return torch.softmax(x, dim=axis)
def _gelu(x):
    return torch.nn.functional.gelu(x, approximate="tanh")
def _silu(x):
    return torch.nn.functional.silu(x)
def _sigmoid(x):
    return torch.sigmoid(x)
def _layernorm(x, axis=-1, eps=1e-5):
    m = x.mean(dim=axis, keepdim=True)
    v = x.var(dim=axis, keepdim=True, unbiased=False)
    return (x - m) / torch.sqrt(v + eps)
def _scatter_add(tgt, idx, src, axis=0):
    return tgt.clone().index_add_(axis, idx, src)
def _segment_sum(src, seg, n):
    out = torch.zeros((n,) + src.shape[1:], dtype=src.dtype)
    return out.index_add_(0, seg, src)
def _pad(x, pw):
    flat = tuple(v for pair in reversed(pw) for v in pair)
    return torch.nn.functional.pad(x, flat)

kernel_name = 'interleave_layers__spectral_fnet__dense_activation_squared_relu__prompt'

def setup_inputs():

    _w = (lambda a: (lambda t: t.to(torch.bfloat16) if t.is_floating_point() else t)(torch.as_tensor(a)))
    def _A_setup():
        B, S, D = 1, 2048, 512
        ns = torch.arange(S)[:, None] * torch.arange(S)[None, :]
        nd = torch.arange(D)[:, None] * torch.arange(D)[None, :]
        Ws_re = torch.cos(-2.0 * torch.pi * ns / S).to(float)
        Ws_im = torch.sin(-2.0 * torch.pi * ns / S).to(float)
        Wd_re = torch.cos(-2.0 * torch.pi * nd / D).to(float)
        Wd_im = torch.sin(-2.0 * torch.pi * nd / D).to(float)
        return {
            "x": _w((lambda *s: torch.randn(*s, dtype=torch.bfloat16) * 0.05)(B, S, D)),
            "dft_seq_re": _w(Ws_re),
            "dft_seq_im": _w(Ws_im),
            "dft_hid_re": _w(Wd_re),
            "dft_hid_im": _w(Wd_im),
        }
    _A_in = _A_setup()

    def _B_setup():
        B, S, D, F = 1, 2048, 512, 1792
        return {
            "x": _w((lambda *s: torch.randn(*s, dtype=torch.bfloat16) * 0.05)(B, S, D)),
            "w1": _w((lambda *s: torch.randn(*s, dtype=torch.bfloat16) * 0.4)(D, F)),
            "b1": _w((lambda *s: torch.randn(*s, dtype=torch.bfloat16) * 0.4)(F)),
            "w2": _w((lambda *s: torch.randn(*s, dtype=torch.bfloat16) * 0.4)(F, D)),
            "b2": _w((lambda *s: torch.randn(*s, dtype=torch.bfloat16) * 0.4)(D)),
        }
    _B_in = _B_setup()

    return {
        "A_x": _A_in["x"],
        "A_dft_seq_re": _A_in["dft_seq_re"],
        "A_dft_seq_im": _A_in["dft_seq_im"],
        "A_dft_hid_re": _A_in["dft_hid_re"],
        "A_dft_hid_im": _A_in["dft_hid_im"],
        "B_x": _B_in["x"],
        "B_w1": _B_in["w1"],
        "B_b1": _B_in["b1"],
        "B_w2": _B_in["w2"],
        "B_b2": _B_in["b2"],
    }

def reference(A_x, A_dft_seq_re, A_dft_seq_im, A_dft_hid_re, A_dft_hid_im, B_x, B_w1, B_b1, B_w2, B_b2):
    def _A_ref(x, dft_seq_re, dft_seq_im, dft_hid_re, dft_hid_im):
        a = torch.einsum("bsd,ed->bse", x, dft_hid_re)
        b = torch.einsum("bsd,ed->bse", x, dft_hid_im)
        y = torch.einsum("ts,bse->bte", dft_seq_re, a) - torch.einsum("ts,bse->bte", dft_seq_im, b)
        return y

    def _B_ref(x, w1, b1, w2, b2):
        h = torch.einsum("bsd,df->bsf", x, w1) + b1
        zero = torch.zeros_like(h)
        r = torch.where(h > zero, h, zero)
        h = r * r
        out = torch.einsum("bsf,fd->bsd", h, w2) + b2
        return out

    x = A_x
    x = x + _A_ref(_layernorm(x, axis=-1), A_dft_seq_re, A_dft_seq_im, A_dft_hid_re, A_dft_hid_im)
    x = x + _B_ref(_layernorm(x, axis=-1), B_w1, B_b1, B_w2, B_b2)
    x = x + _A_ref(_layernorm(x, axis=-1), A_dft_seq_re, A_dft_seq_im, A_dft_hid_re, A_dft_hid_im)
    x = x + _B_ref(_layernorm(x, axis=-1), B_w1, B_b1, B_w2, B_b2)
    return x
```

```python
import sys

NAME = "interleave_layers__spectral_fnet__dense_activation_squared_relu__prompt"
S, D, F = 2048, 512, 1792

WS_W1T = 0
WS_W2T = 2 << 20
WS_Z = 4 << 20
WS_ABT = 6 << 20
WS_Y = 10 << 20
WS_H = 14 << 20

PTR = dict(x=36, ws_re=38, ws_im=40, wd_re=42, wd_im=44, bx=46, w1=48, b1=50,
           w2=52, b2=54, out=56, dbg=58, ws=60)


class Kern:
    def __init__(self, name):
        self.name = name
        self.lines = []
        self.nv = 1
        self.lds = 0
        self.uid = 0

    def e(self, s):
        self.lines.append("    " + s)

    def label(self, l):
        self.lines.append(l + ":")

    def vnew(self, n=1, align=1):
        while self.nv % align:
            self.nv += 1
        r = self.nv
        self.nv += n
        return r

    def load_ptrs(self):
        self.e("s_load_dwordx16 s[36:51], s[0:1], 0")
        self.e("s_load_dwordx8 s[52:59], s[0:1], 64")
        self.e("s_load_dwordx2 s[60:61], s[0:1], 96")

    def srd(self, d, ptr, off, size):
        p = PTR[ptr] if isinstance(ptr, str) else ptr
        if off:
            self.e(f"s_add_u32 s{d}, s{p}, {off}")
            self.e(f"s_addc_u32 s{d+1}, s{p+1}, 0")
        else:
            self.e(f"s_mov_b32 s{d}, s{p}")
            self.e(f"s_mov_b32 s{d+1}, s{p+1}")
        self.e(f"s_mov_b32 s{d+2}, {size}")
        self.e(f"s_mov_b32 s{d+3}, 0x00020000")

    def text(self):
        vg = max(self.nv, 1)
        vg = (vg + 7) // 8 * 8
        out = []
        out.append(f".globl {self.name}")
        out.append(".p2align 8")
        out.append(f".type {self.name},@function")
        out.append(f"{self.name}:")
        out += self.lines
        out.append("    s_endpgm")
        kd = [
            f".amdhsa_kernel {self.name}",
            f"  .amdhsa_next_free_vgpr {vg}",
            "  .amdhsa_next_free_sgpr 96",
            f"  .amdhsa_accum_offset {vg}",
            "  .amdhsa_group_segment_fixed_size 0",
            "  .amdhsa_kernarg_size 104",
            "  .amdhsa_user_sgpr_count 2",
            "  .amdhsa_user_sgpr_kernarg_segment_ptr 1",
            "  .amdhsa_system_sgpr_workgroup_id_x 1",
            ".end_amdhsa_kernel",
        ]
        return out, kd


def wave_allreduce(k, v, tmp, extra=None):
    pairs = [(v, tmp)] + ([extra] if extra else [])
    rots = [8, 4, 2, 1]
    cur = [p[0] for p in pairs]
    oth = [p[1] for p in pairs]
    for r in rots:
        k.e("s_nop 1")
        for i in range(len(pairs)):
            k.e(f"v_add_f32_dpp v{oth[i]}, v{cur[i]}, v{cur[i]} row_ror:{r} row_mask:0xf bank_mask:0xf")
        cur, oth = oth, cur
    k.e("s_nop 1")
    base = 70
    for i, p in enumerate(pairs):
        for q in range(4):
            k.e(f"v_readlane_b32 s{base + 4*i + q}, v{p[0]}, {16*q}")
    k.e("s_nop 1")
    for i, p in enumerate(pairs):
        k.e(f"v_mov_b32 v{p[0]}, s{base + 4*i}")
        for q in range(1, 4):
            k.e(f"v_add_f32 v{p[0]}, s{base + 4*i + q}, v{p[0]}")


def bf16r(k, dst, src):
    k.e(f"v_cvt_pk_bf16_f32 v{dst}, v{src}, v{src}")
    k.e(f"v_lshlrev_b32 v{dst}, 16, v{dst}")


def gen_ln(name, mode):
    k = Kern(name)
    nrow_wg = S // 4
    ntot = nrow_wg + (112 if mode == 'ln0' else 0)
    k.e(f"s_cmp_ge_u32 s2, {ntot}")
    k.e(f"s_cbranch_scc1 {name}_end")
    k.load_ptrs()
    vlane = k.vnew()
    vt = k.vnew()
    k.e(f"v_and_b32 v{vlane}, 63, v0")
    k.e(f"v_lshrrev_b32 v{vt}, 6, v0")
    k.e("s_nop 0")
    k.e(f"v_readfirstlane_b32 s26, v{vt}")
    k.e("s_nop 1")
    if mode == 'ln0':
        k.e(f"s_cmp_ge_u32 s2, {nrow_wg}")
        k.e(f"s_cbranch_scc1 {name}_tr")
    k.e("s_lshl_b32 s27, s2, 2")
    k.e("s_add_u32 s27, s27, s26")
    k.e("s_lshl_b32 s28, s27, 10")
    voff = k.vnew()
    k.e(f"v_lshlrev_b32 v{voff}, 4, v{vlane}")
    k.e("s_waitcnt lgkmcnt(0)")
    XB = S * D * 2
    if mode == 'ln0':
        k.srd(4, 'x', 0, XB)
    else:
        k.srd(4, 'out', 0, XB)
    k.srd(8, 'out', 0, XB)
    k.srd(12, 'ws', WS_Z, XB)
    vx = k.vnew(4, 4)
    k.e(f"buffer_load_dwordx4 v[{vx}:{vx+3}], v{voff}, s[4:7], s28 offen")
    if mode == 'comb':
        k.srd(16, 'ws', WS_Y, XB)
        k.srd(20, 'ws', WS_Y + XB, XB)
        vre = k.vnew(4, 4)
        vim = k.vnew(4, 4)
        k.e(f"buffer_load_dwordx4 v[{vre}:{vre+3}], v{voff}, s[16:19], s28 offen")
        k.e(f"buffer_load_dwordx4 v[{vim}:{vim+3}], v{voff}, s[20:23], s28 offen")
    ve = k.vnew(8)
    vq = k.vnew(8)
    k.e("s_waitcnt vmcnt(0)")
    if mode == 'comb':
        va = k.vnew(8)
        for u in range(4):
            k.e(f"v_lshlrev_b32 v{ve+2*u}, 16, v{vre+u}")
            k.e(f"v_and_b32 v{ve+2*u+1}, 0xffff0000, v{vre+u}")
            k.e(f"v_lshlrev_b32 v{va+2*u}, 16, v{vim+u}")
            k.e(f"v_and_b32 v{va+2*u+1}, 0xffff0000, v{vim+u}")
        for u in range(8):
            k.e(f"v_sub_f32 v{ve+u}, v{ve+u}, v{va+u}")
        for u in range(4):
            k.e(f"v_cvt_pk_bf16_f32 v{vre+u}, v{ve+2*u}, v{ve+2*u+1}")
        for u in range(4):
            k.e(f"v_lshlrev_b32 v{ve+2*u}, 16, v{vre+u}")
            k.e(f"v_and_b32 v{ve+2*u+1}, 0xffff0000, v{vre+u}")
            k.e(f"v_lshlrev_b32 v{va+2*u}, 16, v{vx+u}")
            k.e(f"v_and_b32 v{va+2*u+1}, 0xffff0000, v{vx+u}")
        for u in range(8):
            k.e(f"v_add_f32 v{ve+u}, v{ve+u}, v{va+u}")
        for u in range(4):
            k.e(f"v_cvt_pk_bf16_f32 v{vx+u}, v{ve+2*u}, v{ve+2*u+1}")
        k.e(f"buffer_store_dwordx4 v[{vx}:{vx+3}], v{voff}, s[8:11], s28 offen")
    elif mode == 'ln0':
        k.e(f"buffer_store_dwordx4 v[{vx}:{vx+3}], v{voff}, s[8:11], s28 offen")
    for u in range(4):
        k.e(f"v_lshlrev_b32 v{ve+2*u}, 16, v{vx+u}")
        k.e(f"v_and_b32 v{ve+2*u+1}, 0xffff0000, v{vx+u}")
    vs = k.vnew()
    vtmp = k.vnew()
    k.e(f"v_add_f32 v{vs}, v{ve}, v{ve+1}")
    for u in range(2, 8):
        k.e(f"v_add_f32 v{vs}, v{vs}, v{ve+u}")
    wave_allreduce(k, vs, vtmp)
    k.e(f"v_mul_f32 v{vs}, 0x3b000000, v{vs}")
    for u in range(8):
        k.e(f"v_sub_f32 v{vq+u}, v{ve+u}, v{vs}")
    vv = k.vnew()
    k.e(f"v_mul_f32 v{vv}, v{vq}, v{vq}")
    for u in range(1, 8):
        k.e(f"v_fmac_f32 v{vv}, v{vq+u}, v{vq+u}")
    wave_allreduce(k, vv, vtmp)
    k.e(f"v_mul_f32 v{vv}, 0x3b000000, v{vv}")
    bf16r(k, vs, vs)
    bf16r(k, vv, vv)
    k.e(f"v_add_f32 v{vv}, 0x3727c5ac, v{vv}")
    bf16r(k, vv, vv)
    k.e(f"v_sqrt_f32 v{vv}, v{vv}")
    k.e("s_nop 0")
    bf16r(k, vv, vv)
    k.e(f"v_rcp_f32 v{vv}, v{vv}")
    k.e("s_nop 0")
    for u in range(8):
        k.e(f"v_sub_f32 v{vq+u}, v{ve+u}, v{vs}")
    for u in range(4):
        k.e(f"v_cvt_pk_bf16_f32 v{ve+u}, v{vq+2*u}, v{vq+2*u+1}")
    for u in range(4):
        k.e(f"v_lshlrev_b32 v{vq+2*u}, 16, v{ve+u}")
        k.e(f"v_and_b32 v{vq+2*u+1}, 0xffff0000, v{ve+u}")
    for u in range(8):
        k.e(f"v_mul_f32 v{vq+u}, v{vq+u}, v{vv}")
    vz = k.vnew(4, 4)
    for u in range(4):
        k.e(f"v_cvt_pk_bf16_f32 v{vz+u}, v{vq+2*u}, v{vq+2*u+1}")
    k.e(f"buffer_store_dwordx4 v[{vz}:{vz+3}], v{voff}, s[12:15], s28 offen")
    k.e(f"s_branch {name}_end")

    if mode == 'ln0':
        k.label(f"{name}_tr")
        k.e(f"s_sub_u32 s27, s2, {nrow_wg}")
        k.e("s_lshl_b32 s27, s27, 2")
        k.e("s_add_u32 s27, s27, s26")
        k.e("s_waitcnt lgkmcnt(0)")
        k.e("s_cmp_ge_u32 s27, 224")
        k.e(f"s_cbranch_scc1 {name}_tr2")
        k.srd(4, 'w1', 0, D * F * 2)
        k.srd(8, 'ws', WS_W1T, D * F * 2)
        k.e("s_mul_i32 s28, s27, 9363")
        k.e("s_lshr_b32 s28, s28, 18")
        k.e("s_mul_i32 s29, s28, 28")
        k.e("s_sub_u32 s29, s27, s29")
        k.e(f"s_mov_b32 s30, {F*2}")
        k.e(f"s_mov_b32 s31, {D*2}")
        k.e(f"s_branch {name}_tr3")
        k.label(f"{name}_tr2")
        k.srd(4, 'w2', 0, D * F * 2)
        k.srd(8, 'ws', WS_W2T, D * F * 2)
        k.e("s_sub_u32 s27, s27, 224")
        k.e("s_lshr_b32 s28, s27, 3")
        k.e("s_and_b32 s29, s27, 7")
        k.e(f"s_mov_b32 s30, {D*2}")
        k.e(f"s_mov_b32 s31, {F*2}")
        k.label(f"{name}_tr3")
        va = k.vnew()
        vb = k.vnew()
        vin_off = k.vnew()
        vout_off = k.vnew()
        k.e(f"v_lshrrev_b32 v{va}, 3, v{vlane}")
        k.e(f"v_and_b32 v{vb}, 7, v{vlane}")
        k.e("s_lshl_b32 s28, s28, 6")
        k.e("s_lshl_b32 s29, s29, 6")
        k.e(f"v_lshlrev_b32 v{va}, 3, v{va}")
        k.e(f"v_add_u32 v{va}, s28, v{va}")
        k.e(f"v_lshlrev_b32 v{vb}, 3, v{vb}")
        k.e(f"v_add_u32 v{vb}, s29, v{vb}")
        k.e(f"v_mul_lo_u32 v{vin_off}, v{va}, s30")
        k.e(f"v_lshlrev_b32 v{vt}, 1, v{vb}")
        k.e(f"v_add_u32 v{vin_off}, v{vin_off}, v{vt}")
        k.e(f"v_mul_lo_u32 v{vout_off}, v{vb}, s31")
        k.e(f"v_lshlrev_b32 v{vt}, 1, v{va}")
        k.e(f"v_add_u32 v{vout_off}, v{vout_off}, v{vt}")
        vin = k.vnew(32, 4)
        vo = k.vnew(32, 4)
        k.e("s_mov_b32 s32, 0")
        for r in range(8):
            k.e(f"buffer_load_dwordx4 v[{vin+4*r}:{vin+4*r+3}], v{vin_off}, s[4:7], s32 offen")
            if r < 7:
                k.e("s_add_u32 s32, s32, s30")
        k.e("s_mov_b32 s33, 0x05040100")
        k.e("s_mov_b32 s34, 0x07060302")
        k.e("s_waitcnt vmcnt(0)")
        for c in range(8):
            u = c >> 1
            sel = "s34" if (c & 1) else "s33"
            for p in range(4):
                k.e(f"v_perm_b32 v{vo+4*c+p}, v{vin+4*(2*p+1)+u}, v{vin+4*(2*p)+u}, {sel}")
        k.e("s_mov_b32 s32, 0")
        for c in range(8):
            k.e(f"buffer_store_dwordx4 v[{vo+4*c}:{vo+4*c+3}], v{vout_off}, s[8:11], s32 offen")
            if c < 7:
                k.e("s_add_u32 s32, s32, s31")
    k.label(f"{name}_end")
    return k


def gen_gemm(cfg):
    name = cfg['name']
    TI, TJ = cfg['TI'], cfg['TJ']
    WGI, WGJ = cfg['WGI'], cfg['WGJ']
    K, NST = cfg['K'], cfg['NST']
    nwg = cfg['nwg']
    WI, WJ = TI // WGI, TJ // WGJ
    NI, NJ = WI // 32, WJ // 32
    NK = K // 64
    STAGE = (TI + TJ) * 128
    GP, GQ = TI // 32, TJ // 32
    G = GP + GQ
    DEP = NST - 1
    k = Kern(name)
    k.lds = STAGE * NST
    nsets = (k.lds + 65535) // 65536

    k.e(f"s_cmp_ge_u32 s2, {nwg}")
    k.e(f"s_cbranch_scc1 {name}_end")
    k.load_ptrs()
    vlane = k.vnew()
    vt = k.vnew()
    vt2 = k.vnew()
    vt3 = k.vnew()
    k.e(f"v_and_b32 v{vlane}, 63, v0")
    k.e(f"v_lshrrev_b32 v{vt}, 6, v0")
    k.e("s_nop 0")
    k.e(f"v_readfirstlane_b32 s26, v{vt}")
    k.e("s_nop 1")
    k.e("s_lshl_b32 s27, s26, 10")
    if WGI == 1:
        k.e("s_mov_b32 s62, 0")
        k.e("s_mov_b32 s63, s26")
    elif WGJ == 1:
        k.e("s_mov_b32 s62, s26")
        k.e("s_mov_b32 s63, 0")
    else:
        k.e("s_lshr_b32 s62, s26, 1")
        k.e("s_and_b32 s63, s26, 1")
    k.e("s_waitcnt lgkmcnt(0)")
    cfg['mapping'](k)
    ldP, ldQ = cfg['ldP'], cfg['ldQ']
    k.e(f"s_mul_i32 s24, s28, {ldP}")
    k.e(f"s_mul_i32 s25, s{cfg.get('qrow_sgpr', 29)}, {ldQ}")
    k.e(f"v_lshrrev_b32 v{vt}, 4, v{vlane}")
    k.e("s_and_b32 s30, s26, 1")
    k.e("s_lshl_b32 s30, s30, 2")
    k.e(f"v_add_u32 v{vt}, s30, v{vt}")
    k.e(f"v_and_b32 v{vt2}, 7, v{vlane}")
    k.e(f"v_xor_b32 v{vt}, v{vt}, v{vt2}")
    k.e(f"v_lshlrev_b32 v{vt}, 4, v{vt}")
    k.e(f"v_lshrrev_b32 v{vt2}, 3, v{vlane}")
    k.e("s_lshl_b32 s30, s26, 3")
    k.e(f"v_add_u32 v{vt2}, s30, v{vt2}")
    voff = []
    k.e(f"s_mov_b32 s31, {ldP}")
    k.e(f"s_mov_b32 s32, {ldQ}")
    for q in range(G):
        r = k.vnew()
        voff.append(r)
        qq = q if q < GP else q - GP
        ld = "s31" if q < GP else "s32"
        k.e(f"v_add_u32 v{vt3}, {32*qq}, v{vt2}")
        k.e(f"v_mul_lo_u32 v{r}, v{vt3}, {ld}")
        k.e(f"v_add_u32 v{r}, v{r}, v{vt}")
    k.e(f"v_and_b32 v{vt}, 31, v{vlane}")
    k.e(f"v_lshrrev_b32 v{vt2}, 1, v{vt}")
    k.e(f"v_and_b32 v{vt2}, 7, v{vt2}")
    k.e(f"v_lshrrev_b32 v{vt3}, 5, v{vlane}")
    k.e(f"v_xor_b32 v{vt2}, v{vt2}, v{vt3}")
    k.e(f"v_lshlrev_b32 v{vt2}, 4, v{vt2}")
    k.e(f"v_lshlrev_b32 v{vt}, 7, v{vt}")
    k.e(f"v_add_u32 v{vt}, v{vt}, v{vt2}")
    k.e(f"s_mul_i32 s30, s62, {WI*128}")
    k.e(f"s_mul_i32 s31, s63, {WJ*128}")
    k.e(f"s_add_u32 s31, s31, {TI*128}")
    aP = [[k.vnew() for _ in range(4)] for _ in range(nsets)]
    aQ = [[k.vnew() for _ in range(4)] for _ in range(nsets)]
    for j4 in range(4):
        k.e(f"v_xor_b32 v{vt2}, {j4 << 5}, v{vt}")
        k.e(f"v_add_u32 v{aP[0][j4]}, s30, v{vt2}")
        k.e(f"v_add_u32 v{aQ[0][j4]}, s31, v{vt2}")
        for s_ in range(1, nsets):
            k.e(f"v_add_u32 v{aP[s_][j4]}, {65536*s_}, v{aP[0][j4]}")
            k.e(f"v_add_u32 v{aQ[s_][j4]}, {65536*s_}, v{aQ[0][j4]}")
    fP = [[k.vnew(4, 4) for _ in range(NI)] for _ in range(2)]
    fQ = [[k.vnew(4, 4) for _ in range(NJ)] for _ in range(2)]
    acc = [[k.vnew(16, 4) for _ in range(NJ)] for _ in range(NI)]

    epi = cfg['epilogue']
    epi_state = epi['pre'](k, cfg, vlane) if 'pre' in epi else None

    def dma(step):
        st = step % NST
        for q in range(G):
            off = st * STAGE + q * 4096
            if off:
                k.e(f"s_add_u32 m0, s27, {off}")
            else:
                k.e("s_mov_b32 m0, s27")
            k.e("s_nop 0")
            srd = "s[4:7]" if q < GP else "s[8:11]"
            so = "s24" if q < GP else "s25"
            k.e(f"buffer_load_dwordx4 v{voff[q]}, {srd}, {so} offen lds")
        k.e("s_add_u32 s24, s24, 128")
        k.e("s_add_u32 s25, s25, 128")

    def rd(setf, j4, base):
        for ii in range(NI):
            off = base + ii * 4096
            k.e(f"ds_read_b128 v[{fP[setf][ii]}:{fP[setf][ii]+3}], v{aP[off >> 16][j4]} offset:{off & 0xffff}")
        for jj in range(NJ):
            off = base + jj * 4096
            k.e(f"ds_read_b128 v[{fQ[setf][jj]}:{fQ[setf][jj]+3}], v{aQ[off >> 16][j4]} offset:{off & 0xffff}")

    for s_ in range(min(DEP, NK)):
        dma(s_)
    for kk in range(NK):
        vm = G * (min(NK, kk + DEP) - 1 - kk)
        k.e(f"s_waitcnt vmcnt({vm})")
        k.e("s_barrier")
        if kk + DEP < NK:
            dma(kk + DEP)
        base = (kk % NST) * STAGE
        rd(0, 0, base)
        for j4 in range(4):
            if j4 < 3:
                rd((j4 + 1) & 1, j4 + 1, base)
                k.e(f"s_waitcnt lgkmcnt({NI+NJ})")
            else:
                k.e("s_waitcnt lgkmcnt(0)")
            sf = j4 & 1
            for ii in range(NI):
                for jj in range(NJ):
                    a = acc[ii][jj]
                    c = "0" if (kk == 0 and j4 == 0) else f"v[{a}:{a+15}]"
                    k.e(f"v_mfma_f32_32x32x16_bf16 v[{a}:{a+15}], v[{fP[sf][ii]}:{fP[sf][ii]+3}], "
                        f"v[{fQ[sf][jj]}:{fQ[sf][jj]+3}], {c}")
    k.e("s_nop 15")
    epi['run'](k, cfg, vlane, acc, epi_state)
    k.label(f"{name}_end")
    return k


def out_addr_setup(k, cfg, vlane):
    TI, TJ, WGI, WGJ = cfg['TI'], cfg['TJ'], cfg['WGI'], cfg['WGJ']
    WI, WJ = TI // WGI, TJ // WGJ
    ldo = cfg['ldo']
    vo = k.vnew()
    vt = k.vnew()
    k.e(f"v_and_b32 v{vo}, 31, v{vlane}")
    k.e(f"s_mul_i32 s30, s63, {WJ}")
    k.e(f"v_add_u32 v{vo}, s30, v{vo}")
    k.e(f"s_mov_b32 s30, {ldo}")
    k.e(f"v_mul_lo_u32 v{vo}, v{vo}, s30")
    k.e(f"v_lshrrev_b32 v{vt}, 5, v{vlane}")
    k.e(f"v_lshlrev_b32 v{vt}, 3, v{vt}")
    k.e(f"v_add_u32 v{vo}, v{vo}, v{vt}")
    k.e(f"s_mul_i32 s33, s29, {ldo}")
    k.e(f"s_mul_i32 s30, s62, {WI}")
    k.e("s_add_u32 s30, s30, s28")
    k.e("s_lshl_b32 s30, s30, 1")
    k.e("s_add_u32 s33, s33, s30")
    return vo


def epi_plain_run(k, cfg, vlane, acc, st):
    ldo = cfg['ldo']
    vo = out_addr_setup(k, cfg, vlane)
    tmps = [k.vnew(2, 2) for _ in range(4)]
    for jj in range(len(acc[0])):
        k.e(f"s_add_u32 s34, s33, {jj*32*ldo}")
        for ii in range(len(acc)):
            a = acc[ii][jj]
            for gq in range(4):
                t = tmps[gq]
                k.e(f"v_cvt_pk_bf16_f32 v{t}, v{a+4*gq}, v{a+4*gq+1}")
                k.e(f"v_cvt_pk_bf16_f32 v{t+1}, v{a+4*gq+2}, v{a+4*gq+3}")
                k.e(f"buffer_store_dwordx2 v[{t}:{t+1}], v{vo}, s[12:15], s34 offen offset:{ii*64+gq*16}")


def bias_pre(ptrname, nbytes):
    def pre(k, cfg, vlane):
        TI, WGI = cfg['TI'], cfg['WGI']
        WI = TI // WGI
        NI = WI // 32
        k.srd(16, ptrname, 0, nbytes)
        vb = k.vnew()
        k.e(f"v_lshrrev_b32 v{vb}, 5, v{vlane}")
        k.e(f"v_lshlrev_b32 v{vb}, 3, v{vb}")
        k.e(f"s_mul_i32 s30, s62, {WI}")
        k.e("s_add_u32 s30, s30, s28")
        k.e("s_lshl_b32 s35, s30, 1")
        regs = [[k.vnew(2, 2) for _ in range(4)] for _ in range(NI)]
        for ii in range(NI):
            for gq in range(4):
                r = regs[ii][gq]
                k.e(f"buffer_load_dwordx2 v[{r}:{r+1}], v{vb}, s[16:19], s35 offen offset:{ii*64+gq*16}")
        return dict(bias=regs)
    return pre


def epi_p3_run(k, cfg, vlane, acc, st):
    ldo = cfg['ldo']
    vo = out_addr_setup(k, cfg, vlane)
    t = k.vnew(2, 2)
    f = k.vnew(4, 2)
    bb = k.vnew(4, 2)
    for jj in range(len(acc[0])):
        k.e(f"s_add_u32 s34, s33, {jj*32*ldo}")
        for ii in range(len(acc)):
            a = acc[ii][jj]
            for gq in range(4):
                b = st['bias'][ii][gq]
                k.e(f"v_cvt_pk_bf16_f32 v{t}, v{a+4*gq}, v{a+4*gq+1}")
                k.e(f"v_cvt_pk_bf16_f32 v{t+1}, v{a+4*gq+2}, v{a+4*gq+3}")
                k.e(f"v_lshlrev_b32 v{f}, 16, v{t}")
                k.e(f"v_and_b32 v{f+1}, 0xffff0000, v{t}")
                k.e(f"v_lshlrev_b32 v{f+2}, 16, v{t+1}")
                k.e(f"v_and_b32 v{f+3}, 0xffff0000, v{t+1}")
                k.e(f"v_lshlrev_b32 v{bb}, 16, v{b}")
                k.e(f"v_and_b32 v{bb+1}, 0xffff0000, v{b}")
                k.e(f"v_lshlrev_b32 v{bb+2}, 16, v{b+1}")
                k.e(f"v_and_b32 v{bb+3}, 0xffff0000, v{b+1}")
                for u in range(4):
                    k.e(f"v_add_f32 v{f+u}, v{f+u}, v{bb+u}")
                k.e(f"v_cvt_pk_bf16_f32 v{t}, v{f}, v{f+1}")
                k.e(f"v_cvt_pk_bf16_f32 v{t+1}, v{f+2}, v{f+3}")
                k.e(f"v_lshlrev_b32 v{f}, 16, v{t}")
                k.e(f"v_and_b32 v{f+1}, 0xffff0000, v{t}")
                k.e(f"v_lshlrev_b32 v{f+2}, 16, v{t+1}")
                k.e(f"v_and_b32 v{f+3}, 0xffff0000, v{t+1}")
                for u in range(4):
                    k.e(f"v_max_f32 v{f+u}, 0, v{f+u}")
                for u in range(4):
                    k.e(f"v_mul_f32 v{f+u}, v{f+u}, v{f+u}")
                k.e(f"v_cvt_pk_bf16_f32 v{t}, v{f}, v{f+1}")
                k.e(f"v_cvt_pk_bf16_f32 v{t+1}, v{f+2}, v{f+3}")
                k.e(f"buffer_store_dwordx2 v[{t}:{t+1}], v{vo}, s[12:15], s34 offen offset:{ii*64+gq*16}")
                k.e("s_nop 0")


def p4_pre(k, cfg, vlane):
    st = bias_pre('b2', D * 2)(k, cfg, vlane)
    vo = out_addr_setup(k, cfg, vlane)
    ldo = cfg['ldo']
    TI, TJ, WGI, WGJ = cfg['TI'], cfg['TJ'], cfg['WGI'], cfg['WGJ']
    NI, NJ = TI // WGI // 32, TJ // WGJ // 32
    regs = [[[k.vnew(2, 2) for _ in range(4)] for _ in range(NI)] for _ in range(NJ)]
    for jj in range(NJ):
        k.e(f"s_add_u32 s34, s33, {jj*32*ldo}")
        for ii in range(NI):
            for gq in range(4):
                r = regs[jj][ii][gq]
                k.e(f"buffer_load_dwordx2 v[{r}:{r+1}], v{vo}, s[12:15], s34 offen offset:{ii*64+gq*16}")
    st['res'] = regs
    st['vo'] = vo
    return st


def epi_p4_run(k, cfg, vlane, acc, st):
    ldo = cfg['ldo']
    vo = st['vo']
    t = k.vnew(2, 2)
    f = k.vnew(4, 2)
    bb = k.vnew(4, 2)
    for jj in range(len(acc[0])):
        k.e(f"s_add_u32 s34, s33, {jj*32*ldo}")
        for ii in range(len(acc)):
            a = acc[ii][jj]
            for gq in range(4):
                b = st['bias'][ii][gq]
                r = st['res'][jj][ii][gq]
                k.e(f"v_cvt_pk_bf16_f32 v{t}, v{a+4*gq}, v{a+4*gq+1}")
                k.e(f"v_cvt_pk_bf16_f32 v{t+1}, v{a+4*gq+2}, v{a+4*gq+3}")
                k.e(f"v_lshlrev_b32 v{f}, 16, v{t}")
                k.e(f"v_and_b32 v{f+1}, 0xffff0000, v{t}")
                k.e(f"v_lshlrev_b32 v{f+2}, 16, v{t+1}")
                k.e(f"v_and_b32 v{f+3}, 0xffff0000, v{t+1}")
                k.e(f"v_lshlrev_b32 v{bb}, 16, v{b}")
                k.e(f"v_and_b32 v{bb+1}, 0xffff0000, v{b}")
                k.e(f"v_lshlrev_b32 v{bb+2}, 16, v{b+1}")
                k.e(f"v_and_b32 v{bb+3}, 0xffff0000, v{b+1}")
                for u in range(4):
                    k.e(f"v_add_f32 v{f+u}, v{f+u}, v{bb+u}")
                k.e(f"v_cvt_pk_bf16_f32 v{t}, v{f}, v{f+1}")
                k.e(f"v_cvt_pk_bf16_f32 v{t+1}, v{f+2}, v{f+3}")
                k.e(f"v_lshlrev_b32 v{f}, 16, v{t}")
                k.e(f"v_and_b32 v{f+1}, 0xffff0000, v{t}")
                k.e(f"v_lshlrev_b32 v{f+2}, 16, v{t+1}")
                k.e(f"v_and_b32 v{f+3}, 0xffff0000, v{t+1}")
                k.e(f"v_lshlrev_b32 v{bb}, 16, v{r}")
                k.e(f"v_and_b32 v{bb+1}, 0xffff0000, v{r}")
                k.e(f"v_lshlrev_b32 v{bb+2}, 16, v{r+1}")
                k.e(f"v_and_b32 v{bb+3}, 0xffff0000, v{r+1}")
                for u in range(4):
                    k.e(f"v_add_f32 v{f+u}, v{f+u}, v{bb+u}")
                k.e(f"v_cvt_pk_bf16_f32 v{t}, v{f}, v{f+1}")
                k.e(f"v_cvt_pk_bf16_f32 v{t+1}, v{f+2}, v{f+3}")
                k.e(f"buffer_store_dwordx2 v[{t}:{t+1}], v{vo}, s[12:15], s34 offen offset:{ii*64+gq*16}")
                k.e("s_nop 0")


def map_p1(k):
    k.e("s_and_b32 s30, s2, 7")
    k.e("s_lshr_b32 s31, s2, 3")
    k.e("s_lshl_b32 s30, s30, 2")
    k.e("s_and_b32 s32, s31, 3")
    k.e("s_add_u32 s30, s30, s32")
    k.e("s_lshl_b32 s28, s30, 6")
    k.e("s_lshr_b32 s31, s31, 2")
    k.e("s_lshl_b32 s29, s31, 7")
    k.srd(4, 'ws', WS_Z, S * D * 2)
    k.e("s_cmp_ge_u32 s29, 512")
    k.e(f"s_cselect_b32 s8, s{PTR['wd_im']}, s{PTR['wd_re']}")
    k.e(f"s_cselect_b32 s9, s{PTR['wd_im']+1}, s{PTR['wd_re']+1}")
    k.e(f"s_mov_b32 s10, {D*D*2}")
    k.e("s_mov_b32 s11, 0x00020000")
    k.e("s_and_b32 s64, s29, 511")
    k.srd(12, 'ws', WS_ABT, 2 * D * S * 2)


def map_p2(k):
    k.e("s_and_b32 s30, s2, 7")
    k.e("s_lshr_b32 s31, s2, 3")
    k.e("s_and_b32 s64, s30, 1")
    k.e("s_lshr_b32 s30, s30, 1")
    k.e("s_lshl_b32 s30, s30, 2")
    k.e("s_and_b32 s32, s31, 3")
    k.e("s_add_u32 s30, s30, s32")
    k.e("s_lshl_b32 s29, s30, 7")
    k.e("s_lshr_b32 s31, s31, 2")
    k.e("s_lshl_b32 s28, s31, 6")
    k.e(f"s_mul_i32 s30, s64, {D*S*2}")
    k.e(f"s_add_u32 s4, s{PTR['ws']}, {WS_ABT}")
    k.e(f"s_addc_u32 s5, s{PTR['ws']+1}, 0")
    k.e("s_add_u32 s4, s4, s30")
    k.e("s_addc_u32 s5, s5, 0")
    k.e(f"s_mov_b32 s6, {D*S*2}")
    k.e("s_mov_b32 s7, 0x00020000")
    k.e("s_cmp_eq_u32 s64, 1")
    k.e(f"s_cselect_b32 s8, s{PTR['ws_im']}, s{PTR['ws_re']}")
    k.e(f"s_cselect_b32 s9, s{PTR['ws_im']+1}, s{PTR['ws_re']+1}")
    k.e(f"s_mov_b32 s10, {S*S*2}")
    k.e("s_mov_b32 s11, 0x00020000")
    k.e(f"s_mul_i32 s30, s64, {S*D*2}")
    k.e(f"s_add_u32 s12, s{PTR['ws']}, {WS_Y}")
    k.e(f"s_addc_u32 s13, s{PTR['ws']+1}, 0")
    k.e("s_add_u32 s12, s12, s30")
    k.e("s_addc_u32 s13, s13, 0")
    k.e(f"s_mov_b32 s14, {S*D*2}")
    k.e("s_mov_b32 s15, 0x00020000")


def map_p3(k):
    k.e("s_and_b32 s30, s2, 7")
    k.e("s_lshr_b32 s31, s2, 3")
    k.e("s_lshl_b32 s30, s30, 1")
    k.e("s_and_b32 s32, s31, 1")
    k.e("s_add_u32 s30, s30, s32")
    k.e("s_lshl_b32 s29, s30, 7")
    k.e("s_lshr_b32 s31, s31, 1")
    k.e("s_lshl_b32 s28, s31, 7")
    k.srd(4, 'ws', WS_W1T, D * F * 2)
    k.srd(8, 'ws', WS_Z, S * D * 2)
    k.srd(12, 'ws', WS_H, S * F * 2)


def map_p4(k):
    k.e("s_and_b32 s30, s2, 7")
    k.e("s_lshr_b32 s31, s2, 3")
    k.e("s_lshl_b32 s30, s30, 2")
    k.e("s_and_b32 s32, s31, 3")
    k.e("s_add_u32 s30, s30, s32")
    k.e("s_lshl_b32 s29, s30, 6")
    k.e("s_lshr_b32 s31, s31, 2")
    k.e("s_lshl_b32 s28, s31, 6")
    k.srd(4, 'ws', WS_W2T, D * F * 2)
    k.srd(8, 'ws', WS_H, S * F * 2)
    k.srd(12, 'out', 0, S * D * 2)


def fix_p1_q(k, cfg, vlane):
    return None


CFG_P1 = dict(name="p1_kernel", nwg=256, TI=64, TJ=128, WGI=1, WGJ=4, K=512, NST=4,
              ldP=D * 2, ldQ=D * 2, ldo=S * 2, mapping=map_p1,
              epilogue=dict(run=epi_plain_run), qrow_sgpr=64)
CFG_P2 = dict(name="p2_kernel", nwg=256, TI=64, TJ=128, WGI=1, WGJ=4, K=2048, NST=4,
              ldP=S * 2, ldQ=S * 2, ldo=D * 2, mapping=map_p2,
              epilogue=dict(run=epi_plain_run))
CFG_P3 = dict(name="p3_kernel", nwg=224, TI=128, TJ=128, WGI=2, WGJ=2, K=512, NST=4,
              ldP=D * 2, ldQ=D * 2, ldo=F * 2, mapping=map_p3,
              epilogue=dict(pre=bias_pre('b1', F * 2), run=epi_p3_run))
CFG_P4 = dict(name="p4_kernel", nwg=256, TI=64, TJ=64, WGI=2, WGJ=2, K=1792, NST=4,
              ldP=F * 2, ldQ=F * 2, ldo=D * 2, mapping=map_p4,
              epilogue=dict(pre=p4_pre, run=epi_p4_run))


def build():
    kernels = []
    kernels.append(gen_ln("ln0_kernel", 'ln0'))
    kernels.append(gen_ln("comb_kernel", 'comb'))
    kernels.append(gen_ln("ln_kernel", 'ln'))
    for cfg in (CFG_P1, CFG_P2, CFG_P3, CFG_P4):
        kernels.append(gen_gemm(cfg))
    kd = {kk.name: kk for kk in kernels}

    def L(n, grid):
        kk = kd[n]
        return f"; @launch kernel={n} grid=({grid},1,1) block=(256,1,1) lds={kk.lds}"
    launches = [
        L("ln0_kernel", S // 4 + 112),
        L("p1_kernel", 256), L("p2_kernel", 256), L("comb_kernel", S // 4),
        L("p3_kernel", 224), L("p4_kernel", 256), L("ln_kernel", S // 4),
        L("p1_kernel", 256), L("p2_kernel", 256), L("comb_kernel", S // 4),
        L("p3_kernel", 224), L("p4_kernel", 256),
    ]
    ref = open(f"cdna_kernels/{NAME}.s.ref").read().splitlines()
    head = [l for l in ref if l.startswith(";") and "@launch" not in l]
    out = head + launches
    out.append('.amdgcn_target "amdgcn-amd-amdhsa--gfx950"')
    out.append(".text")
    kds = []
    for kk in kernels:
        body, d = kk.text()
        out += body
        kds += d
    out.append('.section .rodata,"a"')
    for i in range(0, len(kds), 10):
        out.append(".p2align 6")
        out += kds[i:i + 10]
    return "\n".join(out) + "\n"


if __name__ == "__main__":
    txt = build()
    path = sys.argv[1] if len(sys.argv) > 1 else f"cdna_kernels/{NAME}.s"
    open(path, "w").write(txt)
    print("wrote", path, len(txt), "bytes")
```

```python
import sys

NAME = "interleave_layers__spectral_fnet__dense_activation_squared_relu__prompt"
S, D, F = 2048, 512, 1792

WS_W1T = 0
WS_W2T = 2 << 20
WS_Z = 4 << 20
WS_ABT = 6 << 20
WS_Y = 10 << 20
WS_H = 14 << 20

PTR = dict(x=36, ws_re=38, ws_im=40, wd_re=42, wd_im=44, bx=46, w1=48, b1=50,
           w2=52, b2=54, out=56, dbg=58, ws=60)


import os
INSTR = int(os.environ.get("INSTR", "0"))
TS_BASE = 128 << 20


class Kern:
    def __init__(self, name):
        self.name = name
        self.lines = []
        self.nv = 1
        self.lds = 0
        self.uid = 0
        self.vm = []

    def e(self, s):
        self.lines.append("    " + s)

    def label(self, l):
        self.lines.append(l + ":")

    def vnew(self, n=1, align=1):
        while self.nv % align:
            self.nv += 1
        r = self.nv
        self.nv += n
        return r

    def vm_issue(self, tag):
        self.vm.append(tag)

    def vm_wait(self, tag):
        c = [i for i, t in enumerate(self.vm) if t == tag]
        if not c:
            return
        idx = max(c)
        n = len(self.vm) - 1 - idx
        assert n <= 63
        self.e(f"s_waitcnt vmcnt({n})")
        self.vm = self.vm[idx + 1:]

    def load_ptrs(self):
        self.e("s_load_dwordx16 s[36:51], s[0:1], 0")
        self.e("s_load_dwordx8 s[52:59], s[0:1], 64")
        self.e("s_load_dwordx2 s[60:61], s[0:1], 96")

    def srd(self, d, ptr, off, size):
        p = PTR[ptr] if isinstance(ptr, str) else ptr
        if off:
            self.e(f"s_add_u32 s{d}, s{p}, {off}")
            self.e(f"s_addc_u32 s{d+1}, s{p+1}, 0")
        else:
            self.e(f"s_mov_b32 s{d}, s{p}")
            self.e(f"s_mov_b32 s{d+1}, s{p+1}")
        self.e(f"s_mov_b32 s{d+2}, {size}")
        self.e(f"s_mov_b32 s{d+3}, 0x00020000")

    def ts(self, n):
        if INSTR:
            self.e(f"s_memtime s[{80+2*n}:{81+2*n}]")
            if n == 0:
                self.e("s_memrealtime s[92:93]")

    def ts_flush(self, n, slot):
        if not INSTR:
            return
        self.e("s_waitcnt vmcnt(0) lgkmcnt(0)")
        self.ts(n)
        self.e("s_memrealtime s[94:95]")
        self.e("s_waitcnt lgkmcnt(0)")
        self.e("s_cmp_lg_u32 s26, 0")
        self.e(f"s_cbranch_scc1 {self.name}_end")
        self.srd(72, 'ws', TS_BASE, 4 << 20)
        self.e(f"s_add_u32 s76, s2, {slot*4096}")
        self.e("s_lshl_b32 s76, s76, 6")
        self.e("s_mov_b64 exec, 1")
        for i in range(n + 1):
            self.e(f"v_mov_b32 v0, s{80+2*i}")
            self.e(f"buffer_store_dword v0, off, s[72:75], s76 offset:{4*i}")
        self.e("v_mov_b32 v0, s92")
        self.e("buffer_store_dword v0, off, s[72:75], s76 offset:56")
        self.e("v_mov_b32 v0, s94")
        self.e("buffer_store_dword v0, off, s[72:75], s76 offset:60")

    def text(self):
        vg = max(self.nv, 1)
        vg = (vg + 7) // 8 * 8
        out = []
        out.append(f".globl {self.name}")
        out.append(".p2align 8")
        out.append(f".type {self.name},@function")
        out.append(f"{self.name}:")
        out += self.lines
        out.append("    s_endpgm")
        kd = [
            f".amdhsa_kernel {self.name}",
            f"  .amdhsa_next_free_vgpr {vg}",
            "  .amdhsa_next_free_sgpr 96",
            f"  .amdhsa_accum_offset {vg}",
            "  .amdhsa_group_segment_fixed_size 0",
            "  .amdhsa_kernarg_size 104",
            "  .amdhsa_user_sgpr_count 2",
            "  .amdhsa_user_sgpr_kernarg_segment_ptr 1",
            "  .amdhsa_system_sgpr_workgroup_id_x 1",
            ".end_amdhsa_kernel",
        ]
        return out, kd


def wave_allreduce(k, v, tmp, extra=None):
    pairs = [(v, tmp)] + ([extra] if extra else [])
    rots = [8, 4, 2, 1]
    cur = [p[0] for p in pairs]
    oth = [p[1] for p in pairs]
    for r in rots:
        k.e("s_nop 1")
        for i in range(len(pairs)):
            k.e(f"v_add_f32_dpp v{oth[i]}, v{cur[i]}, v{cur[i]} row_ror:{r} row_mask:0xf bank_mask:0xf")
        cur, oth = oth, cur
    k.e("s_nop 1")
    base = 70
    for i, p in enumerate(pairs):
        for q in range(4):
            k.e(f"v_readlane_b32 s{base + 4*i + q}, v{p[0]}, {16*q}")
    k.e("s_nop 1")
    for i, p in enumerate(pairs):
        k.e(f"v_mov_b32 v{p[0]}, s{base + 4*i}")
        for q in range(1, 4):
            k.e(f"v_add_f32 v{p[0]}, s{base + 4*i + q}, v{p[0]}")


def bf16r(k, dst, src):
    k.e(f"v_cvt_pk_bf16_f32 v{dst}, v{src}, v{src}")
    k.e(f"v_lshlrev_b32 v{dst}, 16, v{dst}")


def gen_ln(name, mode):
    k = Kern(name)
    nrow_wg = S // 4
    ntot = nrow_wg + (112 if mode == 'ln0' else 0)
    k.e(f"s_cmp_ge_u32 s2, {ntot}")
    k.e(f"s_cbranch_scc1 {name}_end")
    k.ts(0)
    k.load_ptrs()
    vlane = k.vnew()
    vt = k.vnew()
    k.e(f"v_and_b32 v{vlane}, 63, v0")
    k.e(f"v_lshrrev_b32 v{vt}, 6, v0")
    k.e("s_nop 0")
    k.e(f"v_readfirstlane_b32 s26, v{vt}")
    k.e("s_nop 1")
    if mode == 'ln0':
        k.e(f"s_cmp_ge_u32 s2, {nrow_wg}")
        k.e(f"s_cbranch_scc1 {name}_tr")
    k.e("s_lshl_b32 s27, s2, 2")
    k.e("s_add_u32 s27, s27, s26")
    k.e("s_lshl_b32 s28, s27, 10")
    voff = k.vnew()
    k.e(f"v_lshlrev_b32 v{voff}, 4, v{vlane}")
    k.e("s_waitcnt lgkmcnt(0)")
    k.ts(1)
    XB = S * D * 2
    if mode == 'ln0':
        k.srd(4, 'x', 0, XB)
    else:
        k.srd(4, 'out', 0, XB)
    k.srd(8, 'out', 0, XB)
    k.srd(12, 'ws', WS_Z, XB)
    vx = k.vnew(4, 4)
    k.e(f"buffer_load_dwordx4 v[{vx}:{vx+3}], v{voff}, s[4:7], s28 offen")
    if mode == 'comb':
        k.srd(16, 'ws', WS_Y, XB)
        k.srd(20, 'ws', WS_Y + XB, XB)
        vre = k.vnew(4, 4)
        vim = k.vnew(4, 4)
        k.e(f"buffer_load_dwordx4 v[{vre}:{vre+3}], v{voff}, s[16:19], s28 offen")
        k.e(f"buffer_load_dwordx4 v[{vim}:{vim+3}], v{voff}, s[20:23], s28 offen")
    ve = k.vnew(8)
    vq = k.vnew(8)
    k.e("s_waitcnt vmcnt(0)")
    k.ts(2)
    if mode == 'comb':
        va = k.vnew(8)
        for u in range(4):
            k.e(f"v_lshlrev_b32 v{ve+2*u}, 16, v{vre+u}")
            k.e(f"v_and_b32 v{ve+2*u+1}, 0xffff0000, v{vre+u}")
            k.e(f"v_lshlrev_b32 v{va+2*u}, 16, v{vim+u}")
            k.e(f"v_and_b32 v{va+2*u+1}, 0xffff0000, v{vim+u}")
        for u in range(8):
            k.e(f"v_sub_f32 v{ve+u}, v{ve+u}, v{va+u}")
        for u in range(4):
            k.e(f"v_cvt_pk_bf16_f32 v{vre+u}, v{ve+2*u}, v{ve+2*u+1}")
        for u in range(4):
            k.e(f"v_lshlrev_b32 v{ve+2*u}, 16, v{vre+u}")
            k.e(f"v_and_b32 v{ve+2*u+1}, 0xffff0000, v{vre+u}")
            k.e(f"v_lshlrev_b32 v{va+2*u}, 16, v{vx+u}")
            k.e(f"v_and_b32 v{va+2*u+1}, 0xffff0000, v{vx+u}")
        for u in range(8):
            k.e(f"v_add_f32 v{ve+u}, v{ve+u}, v{va+u}")
        for u in range(4):
            k.e(f"v_cvt_pk_bf16_f32 v{vx+u}, v{ve+2*u}, v{ve+2*u+1}")
        k.e(f"buffer_store_dwordx4 v[{vx}:{vx+3}], v{voff}, s[8:11], s28 offen")
    elif mode == 'ln0':
        k.e(f"buffer_store_dwordx4 v[{vx}:{vx+3}], v{voff}, s[8:11], s28 offen")
    for u in range(4):
        k.e(f"v_lshlrev_b32 v{ve+2*u}, 16, v{vx+u}")
        k.e(f"v_and_b32 v{ve+2*u+1}, 0xffff0000, v{vx+u}")
    vs = k.vnew()
    vtmp = k.vnew()
    k.e(f"v_add_f32 v{vs}, v{ve}, v{ve+1}")
    for u in range(2, 8):
        k.e(f"v_add_f32 v{vs}, v{vs}, v{ve+u}")
    wave_allreduce(k, vs, vtmp)
    k.e(f"v_mul_f32 v{vs}, 0x3b000000, v{vs}")
    for u in range(8):
        k.e(f"v_sub_f32 v{vq+u}, v{ve+u}, v{vs}")
    vv = k.vnew()
    k.e(f"v_mul_f32 v{vv}, v{vq}, v{vq}")
    for u in range(1, 8):
        k.e(f"v_fmac_f32 v{vv}, v{vq+u}, v{vq+u}")
    wave_allreduce(k, vv, vtmp)
    k.e(f"v_mul_f32 v{vv}, 0x3b000000, v{vv}")
    bf16r(k, vs, vs)
    bf16r(k, vv, vv)
    k.e(f"v_add_f32 v{vv}, 0x3727c5ac, v{vv}")
    bf16r(k, vv, vv)
    k.e(f"v_sqrt_f32 v{vv}, v{vv}")
    k.e("s_nop 0")
    bf16r(k, vv, vv)
    k.e(f"v_rcp_f32 v{vv}, v{vv}")
    k.e("s_nop 0")
    for u in range(8):
        k.e(f"v_sub_f32 v{vq+u}, v{ve+u}, v{vs}")
    for u in range(4):
        k.e(f"v_cvt_pk_bf16_f32 v{ve+u}, v{vq+2*u}, v{vq+2*u+1}")
    for u in range(4):
        k.e(f"v_lshlrev_b32 v{vq+2*u}, 16, v{ve+u}")
        k.e(f"v_and_b32 v{vq+2*u+1}, 0xffff0000, v{ve+u}")
    for u in range(8):
        k.e(f"v_mul_f32 v{vq+u}, v{vq+u}, v{vv}")
    vz = k.vnew(4, 4)
    for u in range(4):
        k.e(f"v_cvt_pk_bf16_f32 v{vz+u}, v{vq+2*u}, v{vq+2*u+1}")
    k.e(f"buffer_store_dwordx4 v[{vz}:{vz+3}], v{voff}, s[12:15], s28 offen")
    k.ts(3)
    k.ts(4)
    k.ts_flush(5, dict(ln0=5, comb=6, ln=7)[mode])
    k.e(f"s_branch {name}_end")

    if mode == 'ln0':
        k.label(f"{name}_tr")
        k.e(f"s_sub_u32 s27, s2, {nrow_wg}")
        k.e("s_lshl_b32 s27, s27, 2")
        k.e("s_add_u32 s27, s27, s26")
        k.e("s_waitcnt lgkmcnt(0)")
        k.e("s_cmp_ge_u32 s27, 224")
        k.e(f"s_cbranch_scc1 {name}_tr2")
        k.srd(4, 'w1', 0, D * F * 2)
        k.srd(8, 'ws', WS_W1T, D * F * 2)
        k.e("s_mul_i32 s28, s27, 9363")
        k.e("s_lshr_b32 s28, s28, 18")
        k.e("s_mul_i32 s29, s28, 28")
        k.e("s_sub_u32 s29, s27, s29")
        k.e(f"s_mov_b32 s30, {F*2}")
        k.e(f"s_mov_b32 s31, {D*2}")
        k.e(f"s_branch {name}_tr3")
        k.label(f"{name}_tr2")
        k.srd(4, 'w2', 0, D * F * 2)
        k.srd(8, 'ws', WS_W2T, D * F * 2)
        k.e("s_sub_u32 s27, s27, 224")
        k.e("s_lshr_b32 s28, s27, 3")
        k.e("s_and_b32 s29, s27, 7")
        k.e(f"s_mov_b32 s30, {D*2}")
        k.e(f"s_mov_b32 s31, {F*2}")
        k.label(f"{name}_tr3")
        va = k.vnew()
        vb = k.vnew()
        vin_off = k.vnew()
        vout_off = k.vnew()
        k.e(f"v_lshrrev_b32 v{va}, 3, v{vlane}")
        k.e(f"v_and_b32 v{vb}, 7, v{vlane}")
        k.e("s_lshl_b32 s28, s28, 6")
        k.e("s_lshl_b32 s29, s29, 6")
        k.e(f"v_lshlrev_b32 v{va}, 3, v{va}")
        k.e(f"v_add_u32 v{va}, s28, v{va}")
        k.e(f"v_lshlrev_b32 v{vb}, 3, v{vb}")
        k.e(f"v_add_u32 v{vb}, s29, v{vb}")
        k.e(f"v_mul_lo_u32 v{vin_off}, v{va}, s30")
        k.e(f"v_lshlrev_b32 v{vt}, 1, v{vb}")
        k.e(f"v_add_u32 v{vin_off}, v{vin_off}, v{vt}")
        k.e(f"v_mul_lo_u32 v{vout_off}, v{vb}, s31")
        k.e(f"v_lshlrev_b32 v{vt}, 1, v{va}")
        k.e(f"v_add_u32 v{vout_off}, v{vout_off}, v{vt}")
        vin = k.vnew(32, 4)
        vo = k.vnew(32, 4)
        k.e("s_mov_b32 s32, 0")
        for r in range(8):
            k.e(f"buffer_load_dwordx4 v[{vin+4*r}:{vin+4*r+3}], v{vin_off}, s[4:7], s32 offen")
            if r < 7:
                k.e("s_add_u32 s32, s32, s30")
        k.e("s_mov_b32 s33, 0x05040100")
        k.e("s_mov_b32 s34, 0x07060302")
        k.e("s_waitcnt vmcnt(0)")
        for c in range(8):
            u = c >> 1
            sel = "s34" if (c & 1) else "s33"
            for p in range(4):
                k.e(f"v_perm_b32 v{vo+4*c+p}, v{vin+4*(2*p+1)+u}, v{vin+4*(2*p)+u}, {sel}")
        k.e("s_mov_b32 s32, 0")
        for c in range(8):
            k.e(f"buffer_store_dwordx4 v[{vo+4*c}:{vo+4*c+3}], v{vout_off}, s[8:11], s32 offen")
            if c < 7:
                k.e("s_add_u32 s32, s32, s31")
    k.label(f"{name}_end")
    return k


def gen_gemm(cfg):
    name = cfg['name']
    TI, TJ = cfg['TI'], cfg['TJ']
    WGI, WGJ = cfg['WGI'], cfg['WGJ']
    K, NST = cfg['K'], cfg['NST']
    nwg = cfg['nwg']
    WI, WJ = TI // WGI, TJ // WGJ
    NI, NJ = WI // 32, WJ // 32
    NK = K // 64
    STAGE = (TI + TJ) * 128
    GP, GQ = TI // 32, TJ // 32
    G = GP + GQ
    DEP = NST - 1
    k = Kern(name)
    k.lds = STAGE * NST
    nsets = (k.lds + 65535) // 65536

    k.e(f"s_cmp_ge_u32 s2, {nwg}")
    k.e(f"s_cbranch_scc1 {name}_end")
    k.ts(0)
    k.load_ptrs()
    vlane = k.vnew()
    vt = k.vnew()
    vt2 = k.vnew()
    vt3 = k.vnew()
    k.e(f"v_and_b32 v{vlane}, 63, v0")
    k.e(f"v_lshrrev_b32 v{vt}, 6, v0")
    k.e("s_nop 0")
    k.e(f"v_readfirstlane_b32 s26, v{vt}")
    k.e("s_nop 1")
    k.e("s_lshl_b32 s27, s26, 10")
    if WGI == 1:
        k.e("s_mov_b32 s62, 0")
        k.e("s_mov_b32 s63, s26")
    elif WGJ == 1:
        k.e("s_mov_b32 s62, s26")
        k.e("s_mov_b32 s63, 0")
    else:
        k.e("s_lshr_b32 s62, s26, 1")
        k.e("s_and_b32 s63, s26, 1")
    k.e("s_waitcnt lgkmcnt(0)")
    k.ts(1)
    cfg['mapping'](k)
    ldP, ldQ = cfg['ldP'], cfg['ldQ']
    k.e(f"s_mul_i32 s24, s28, {ldP}")
    k.e(f"s_mul_i32 s25, s{cfg.get('qrow_sgpr', 29)}, {ldQ}")
    k.e(f"v_lshrrev_b32 v{vt}, 4, v{vlane}")
    k.e("s_and_b32 s30, s26, 1")
    k.e("s_lshl_b32 s30, s30, 2")
    k.e(f"v_add_u32 v{vt}, s30, v{vt}")
    k.e(f"v_and_b32 v{vt2}, 7, v{vlane}")
    k.e(f"v_xor_b32 v{vt}, v{vt}, v{vt2}")
    k.e(f"v_lshlrev_b32 v{vt}, 4, v{vt}")
    k.e(f"v_lshrrev_b32 v{vt2}, 3, v{vlane}")
    k.e("s_lshl_b32 s30, s26, 3")
    k.e(f"v_add_u32 v{vt2}, s30, v{vt2}")
    voff = []
    k.e(f"s_mov_b32 s31, {ldP}")
    k.e(f"s_mov_b32 s32, {ldQ}")
    for q in range(G):
        r = k.vnew()
        voff.append(r)
        qq = q if q < GP else q - GP
        ld = "s31" if q < GP else "s32"
        k.e(f"v_add_u32 v{vt3}, {32*qq}, v{vt2}")
        k.e(f"v_mul_lo_u32 v{r}, v{vt3}, {ld}")
        k.e(f"v_add_u32 v{r}, v{r}, v{vt}")
    k.e(f"v_and_b32 v{vt}, 31, v{vlane}")
    k.e(f"v_lshrrev_b32 v{vt2}, 1, v{vt}")
    k.e(f"v_and_b32 v{vt2}, 7, v{vt2}")
    k.e(f"v_lshrrev_b32 v{vt3}, 5, v{vlane}")
    k.e(f"v_xor_b32 v{vt2}, v{vt2}, v{vt3}")
    k.e(f"v_lshlrev_b32 v{vt2}, 4, v{vt2}")
    k.e(f"v_lshlrev_b32 v{vt}, 7, v{vt}")
    k.e(f"v_add_u32 v{vt}, v{vt}, v{vt2}")
    k.e(f"s_mul_i32 s30, s62, {WI*128}")
    k.e(f"s_mul_i32 s31, s63, {WJ*128}")
    k.e(f"s_add_u32 s31, s31, {TI*128}")
    aP = [[k.vnew() for _ in range(4)] for _ in range(nsets)]
    aQ = [[k.vnew() for _ in range(4)] for _ in range(nsets)]
    for j4 in range(4):
        k.e(f"v_xor_b32 v{vt2}, {j4 << 5}, v{vt}")
        k.e(f"v_add_u32 v{aP[0][j4]}, s30, v{vt2}")
        k.e(f"v_add_u32 v{aQ[0][j4]}, s31, v{vt2}")
        for s_ in range(1, nsets):
            k.e(f"v_add_u32 v{aP[s_][j4]}, {65536*s_}, v{aP[0][j4]}")
            k.e(f"v_add_u32 v{aQ[s_][j4]}, {65536*s_}, v{aQ[0][j4]}")
    fP = [[k.vnew(4, 4) for _ in range(NI)] for _ in range(2)]
    fQ = [[k.vnew(4, 4) for _ in range(NJ)] for _ in range(2)]
    acc = [[k.vnew(16, 4) for _ in range(NJ)] for _ in range(NI)]

    epi = cfg['epilogue']

    def dma_ops(step):
        st = step % NST
        ops = []
        for q in range(G):
            off = st * STAGE + q * 4096
            pre = f"s_add_u32 m0, s27, {off}" if off else "s_mov_b32 m0, s27"
            srd = "s[4:7]" if q < GP else "s[8:11]"
            so = "s24" if q < GP else "s25"
            ops.append((pre, f"buffer_load_dwordx4 v{voff[q]}, {srd}, {so} offen lds"))
        return ops

    def dma_done(step):
        k.e("s_add_u32 s24, s24, 128")
        k.e("s_add_u32 s25, s25, 128")

    def dma(step):
        for pre, iss in dma_ops(step):
            k.e(pre)
            k.e("s_nop 0")
            k.e(iss)
            k.vm_issue(("dma", step))
        dma_done(step)

    def rd(setf, j4, base):
        for ii in range(NI):
            off = base + ii * 4096
            k.e(f"ds_read_b128 v[{fP[setf][ii]}:{fP[setf][ii]+3}], v{aP[off >> 16][j4]} offset:{off & 0xffff}")
        for jj in range(NJ):
            off = base + jj * 4096
            k.e(f"ds_read_b128 v[{fQ[setf][jj]}:{fQ[setf][jj]+3}], v{aQ[off >> 16][j4]} offset:{off & 0xffff}")

    def mfmas(kk, j4, dstep=None):
        sf = j4 & 1
        ops = dma_ops(dstep) if dstep is not None else []
        nm = NI * NJ
        per = (len(ops) + nm - 1) // nm if ops else 0
        n = 0
        for ii in range(NI):
            for jj in range(NJ):
                a = acc[ii][jj]
                c = "0" if (kk == 0 and j4 == 0) else f"v[{a}:{a+15}]"
                mine = ops[n * per:(n + 1) * per]
                if mine:
                    k.e(mine[0][0])
                k.e(f"v_mfma_f32_32x32x16_bf16 v[{a}:{a+15}], v[{fP[sf][ii]}:{fP[sf][ii]+3}], "
                    f"v[{fQ[sf][jj]}:{fQ[sf][jj]+3}], {c}")
                for qi, (pre, iss) in enumerate(mine):
                    if qi:
                        k.e(pre)
                        k.e("s_nop 0")
                    k.e(iss)
                    k.vm_issue(("dma", dstep))
                n += 1
        if dstep is not None:
            dma_done(dstep)

    for s_ in range(min(DEP, NK)):
        dma(s_)
    epi_state = epi['pre'](k, cfg, vlane) if 'pre' in epi else None
    k.vm_wait(("dma", 0))
    k.e("s_barrier")
    k.ts(2)
    rd(0, 0, 0)
    for kk in range(NK):
        base = (kk % NST) * STAGE
        for j4 in range(3):
            rd((j4 + 1) & 1, j4 + 1, base)
            k.e(f"s_waitcnt lgkmcnt({NI+NJ})")
            mfmas(kk, j4)
        if kk + 1 < NK:
            k.vm_wait(("dma", kk + 1))
            k.e("s_barrier")
            rd(0, 0, ((kk + 1) % NST) * STAGE)
            k.e(f"s_waitcnt lgkmcnt({NI+NJ})")
            ds = kk - 1 + NST
            mfmas(kk, 3, ds if ds < NK else None)
        else:
            k.e("s_waitcnt lgkmcnt(0)")
            mfmas(kk, 3)
        if kk == min(1, NK - 1) and 'mid' in epi:
            epi['mid'](k, cfg, vlane, epi_state)
    k.e("s_nop 15")
    k.ts(3)
    epi['run'](k, cfg, vlane, acc, epi_state)
    k.ts(4)
    k.ts_flush(5, cfg.get('slot', 0))
    k.label(f"{name}_end")
    return k


def out_addr_setup(k, cfg, vlane):
    TI, TJ, WGI, WGJ = cfg['TI'], cfg['TJ'], cfg['WGI'], cfg['WGJ']
    WI, WJ = TI // WGI, TJ // WGJ
    ldo = cfg['ldo']
    vo = k.vnew()
    vo8 = k.vnew()
    vt = k.vnew()
    k.e(f"v_and_b32 v{vo}, 31, v{vlane}")
    k.e(f"s_mul_i32 s30, s63, {WJ}")
    k.e(f"v_add_u32 v{vo}, s30, v{vo}")
    k.e(f"s_mov_b32 s30, {ldo}")
    k.e(f"v_mul_lo_u32 v{vo}, v{vo}, s30")
    k.e(f"v_lshrrev_b32 v{vt}, 5, v{vlane}")
    k.e(f"v_lshlrev_b32 v{vt}, 3, v{vt}")
    k.e(f"v_add_u32 v{vo8}, v{vo}, v{vt}")
    k.e(f"v_add_u32 v{vo}, v{vo8}, v{vt}")
    k.e(f"s_mul_i32 s33, s29, {ldo}")
    k.e(f"s_mul_i32 s30, s62, {WI}")
    k.e("s_add_u32 s30, s30, s28")
    k.e("s_lshl_b32 s30, s30, 1")
    k.e("s_add_u32 s33, s33, s30")
    return vo, vo8


def unpack(k, f, t):
    k.e(f"v_lshlrev_b32 v{f}, 16, v{t}")
    k.e(f"v_and_b32 v{f+1}, 0xffff0000, v{t}")
    k.e(f"v_lshlrev_b32 v{f+2}, 16, v{t+1}")
    k.e(f"v_and_b32 v{f+3}, 0xffff0000, v{t+1}")


def pack(k, t, f):
    k.e(f"v_cvt_pk_bf16_f32 v{t}, v{f}, v{f+1}")
    k.e(f"v_cvt_pk_bf16_f32 v{t+1}, v{f+2}, v{f+3}")


def store_pair(k, t, vo, off):
    k.e("s_nop 1")
    k.e(f"v_permlane32_swap_b32 v{t}, v{t+2}")
    k.e(f"v_permlane32_swap_b32 v{t+1}, v{t+3}")
    k.e(f"buffer_store_dwordx4 v[{t}:{t+3}], v{vo}, s[12:15], s34 offen offset:{off}")


def epi_plain_run(k, cfg, vlane, acc, st):
    ldo = cfg['ldo']
    vo, _ = out_addr_setup(k, cfg, vlane)
    tmps = [k.vnew(4, 4) for _ in range(2)]
    n = 0
    for jj in range(len(acc[0])):
        k.e(f"s_add_u32 s34, s33, {jj*32*ldo}")
        for ii in range(len(acc)):
            a = acc[ii][jj]
            for pr in range(2):
                t = tmps[n & 1]
                n += 1
                for u in range(4):
                    k.e(f"v_cvt_pk_bf16_f32 v{t+u}, v{a+8*pr+2*u}, v{a+8*pr+2*u+1}")
                store_pair(k, t, vo, ii * 64 + pr * 32)


def bias_pre(ptrname, nbytes):
    def pre(k, cfg, vlane):
        TI, WGI = cfg['TI'], cfg['WGI']
        WI = TI // WGI
        NI = WI // 32
        k.srd(16, ptrname, 0, nbytes)
        vb = k.vnew()
        k.e(f"v_lshrrev_b32 v{vb}, 5, v{vlane}")
        k.e(f"v_lshlrev_b32 v{vb}, 3, v{vb}")
        k.e(f"s_mul_i32 s30, s62, {WI}")
        k.e("s_add_u32 s30, s30, s28")
        k.e("s_lshl_b32 s35, s30, 1")
        regs = [[k.vnew(2, 2) for _ in range(4)] for _ in range(NI)]
        for ii in range(NI):
            for gq in range(4):
                r = regs[ii][gq]
                k.e(f"buffer_load_dwordx2 v[{r}:{r+1}], v{vb}, s[16:19], s35 offen offset:{ii*64+gq*16}")
                k.vm_issue("bias")
        return dict(bias=regs)
    return pre


def bias_mid(k, cfg, vlane, st):
    k.vm_wait("bias")
    out = []
    for row in st['bias']:
        o = []
        for r in row:
            f = k.vnew(4, 2)
            unpack(k, f, r)
            o.append(f)
        out.append(o)
    st['biasf'] = out


def epi_p3_run(k, cfg, vlane, acc, st):
    ldo = cfg['ldo']
    vo, _ = out_addr_setup(k, cfg, vlane)
    tmps = [k.vnew(4, 4) for _ in range(2)]
    t = k.vnew(2, 2)
    f = k.vnew(4, 2)
    n = 0
    for jj in range(len(acc[0])):
        k.e(f"s_add_u32 s34, s33, {jj*32*ldo}")
        for ii in range(len(acc)):
            a = acc[ii][jj]
            for pr in range(2):
                o = tmps[n & 1]
                n += 1
                for g2 in range(2):
                    gq = 2 * pr + g2
                    bb = st['biasf'][ii][gq]
                    k.e(f"v_cvt_pk_bf16_f32 v{t}, v{a+4*gq}, v{a+4*gq+1}")
                    k.e(f"v_cvt_pk_bf16_f32 v{t+1}, v{a+4*gq+2}, v{a+4*gq+3}")
                    unpack(k, f, t)
                    k.e(f"v_pk_add_f32 v[{f}:{f+1}], v[{f}:{f+1}], v[{bb}:{bb+1}]")
                    k.e(f"v_pk_add_f32 v[{f+2}:{f+3}], v[{f+2}:{f+3}], v[{bb+2}:{bb+3}]")
                    pack(k, t, f)
                    k.e(f"v_pk_max_i16 v{t}, v{t}, 0")
                    k.e(f"v_pk_max_i16 v{t+1}, v{t+1}, 0")
                    unpack(k, f, t)
                    k.e(f"v_pk_mul_f32 v[{f}:{f+1}], v[{f}:{f+1}], v[{f}:{f+1}]")
                    k.e(f"v_pk_mul_f32 v[{f+2}:{f+3}], v[{f+2}:{f+3}], v[{f+2}:{f+3}]")
                    pack(k, o + 2 * g2, f)
                store_pair(k, o, vo, ii * 64 + pr * 32)


def p4_pre(k, cfg, vlane):
    st = bias_pre('b2', D * 2)(k, cfg, vlane)
    vo, vo8 = out_addr_setup(k, cfg, vlane)
    ldo = cfg['ldo']
    TI, TJ, WGI, WGJ = cfg['TI'], cfg['TJ'], cfg['WGI'], cfg['WGJ']
    NI, NJ = TI // WGI // 32, TJ // WGJ // 32
    regs = [[[k.vnew(2, 2) for _ in range(4)] for _ in range(NI)] for _ in range(NJ)]
    for jj in range(NJ):
        k.e(f"s_add_u32 s34, s33, {jj*32*ldo}")
        for ii in range(NI):
            for gq in range(4):
                r = regs[jj][ii][gq]
                k.e(f"buffer_load_dwordx2 v[{r}:{r+1}], v{vo8}, s[12:15], s34 offen offset:{ii*64+gq*16}")
                k.vm_issue("res")
    st['res'] = regs
    st['vo'] = vo
    return st


def p4_mid(k, cfg, vlane, st):
    k.vm_wait("res")
    bias_mid(k, cfg, vlane, st)
    out = []
    for jr in st['res']:
        o1 = []
        for ir in jr:
            o2 = []
            for r in ir:
                f = k.vnew(4, 2)
                unpack(k, f, r)
                o2.append(f)
            o1.append(o2)
        out.append(o1)
    st['resf'] = out


def epi_p4_run(k, cfg, vlane, acc, st):
    ldo = cfg['ldo']
    vo = st['vo']
    tmps = [k.vnew(4, 4) for _ in range(2)]
    t = k.vnew(2, 2)
    f = k.vnew(4, 2)
    n = 0
    for jj in range(len(acc[0])):
        k.e(f"s_add_u32 s34, s33, {jj*32*ldo}")
        for ii in range(len(acc)):
            a = acc[ii][jj]
            for pr in range(2):
                o = tmps[n & 1]
                n += 1
                for g2 in range(2):
                    gq = 2 * pr + g2
                    bb = st['biasf'][ii][gq]
                    rr = st['resf'][jj][ii][gq]
                    k.e(f"v_cvt_pk_bf16_f32 v{t}, v{a+4*gq}, v{a+4*gq+1}")
                    k.e(f"v_cvt_pk_bf16_f32 v{t+1}, v{a+4*gq+2}, v{a+4*gq+3}")
                    unpack(k, f, t)
                    k.e(f"v_pk_add_f32 v[{f}:{f+1}], v[{f}:{f+1}], v[{bb}:{bb+1}]")
                    k.e(f"v_pk_add_f32 v[{f+2}:{f+3}], v[{f+2}:{f+3}], v[{bb+2}:{bb+3}]")
                    pack(k, t, f)
                    unpack(k, f, t)
                    k.e(f"v_pk_add_f32 v[{f}:{f+1}], v[{f}:{f+1}], v[{rr}:{rr+1}]")
                    k.e(f"v_pk_add_f32 v[{f+2}:{f+3}], v[{f+2}:{f+3}], v[{rr+2}:{rr+3}]")
                    pack(k, o + 2 * g2, f)
                store_pair(k, o, vo, ii * 64 + pr * 32)


def map_p1(k):
    k.e("s_and_b32 s30, s2, 7")
    k.e("s_lshr_b32 s31, s2, 3")
    k.e("s_lshl_b32 s30, s30, 2")
    k.e("s_and_b32 s32, s31, 3")
    k.e("s_add_u32 s30, s30, s32")
    k.e("s_lshl_b32 s28, s30, 6")
    k.e("s_lshr_b32 s31, s31, 2")
    k.e("s_lshl_b32 s29, s31, 7")
    k.srd(4, 'ws', WS_Z, S * D * 2)
    k.e("s_cmp_ge_u32 s29, 512")
    k.e(f"s_cselect_b32 s8, s{PTR['wd_im']}, s{PTR['wd_re']}")
    k.e(f"s_cselect_b32 s9, s{PTR['wd_im']+1}, s{PTR['wd_re']+1}")
    k.e(f"s_mov_b32 s10, {D*D*2}")
    k.e("s_mov_b32 s11, 0x00020000")
    k.e("s_and_b32 s64, s29, 511")
    k.srd(12, 'ws', WS_ABT, 2 * D * S * 2)


def map_p2(k):
    k.e("s_and_b32 s30, s2, 7")
    k.e("s_lshr_b32 s31, s2, 3")
    k.e("s_and_b32 s64, s30, 1")
    k.e("s_lshr_b32 s30, s30, 1")
    k.e("s_lshl_b32 s30, s30, 2")
    k.e("s_and_b32 s32, s31, 3")
    k.e("s_add_u32 s30, s30, s32")
    k.e("s_lshl_b32 s29, s30, 7")
    k.e("s_lshr_b32 s31, s31, 2")
    k.e("s_lshl_b32 s28, s31, 6")
    k.e(f"s_mul_i32 s30, s64, {D*S*2}")
    k.e(f"s_add_u32 s4, s{PTR['ws']}, {WS_ABT}")
    k.e(f"s_addc_u32 s5, s{PTR['ws']+1}, 0")
    k.e("s_add_u32 s4, s4, s30")
    k.e("s_addc_u32 s5, s5, 0")
    k.e(f"s_mov_b32 s6, {D*S*2}")
    k.e("s_mov_b32 s7, 0x00020000")
    k.e("s_cmp_eq_u32 s64, 1")
    k.e(f"s_cselect_b32 s8, s{PTR['ws_im']}, s{PTR['ws_re']}")
    k.e(f"s_cselect_b32 s9, s{PTR['ws_im']+1}, s{PTR['ws_re']+1}")
    k.e(f"s_mov_b32 s10, {S*S*2}")
    k.e("s_mov_b32 s11, 0x00020000")
    k.e(f"s_mul_i32 s30, s64, {S*D*2}")
    k.e(f"s_add_u32 s12, s{PTR['ws']}, {WS_Y}")
    k.e(f"s_addc_u32 s13, s{PTR['ws']+1}, 0")
    k.e("s_add_u32 s12, s12, s30")
    k.e("s_addc_u32 s13, s13, 0")
    k.e(f"s_mov_b32 s14, {S*D*2}")
    k.e("s_mov_b32 s15, 0x00020000")


def map_p3(k):
    k.e("s_and_b32 s30, s2, 7")
    k.e("s_lshr_b32 s31, s2, 3")
    k.e("s_lshl_b32 s30, s30, 1")
    k.e("s_and_b32 s32, s31, 1")
    k.e("s_add_u32 s30, s30, s32")
    k.e("s_lshl_b32 s29, s30, 7")
    k.e("s_lshr_b32 s31, s31, 1")
    k.e("s_lshl_b32 s28, s31, 7")
    k.srd(4, 'ws', WS_W1T, D * F * 2)
    k.srd(8, 'ws', WS_Z, S * D * 2)
    k.srd(12, 'ws', WS_H, S * F * 2)


def map_p4(k):
    k.e("s_and_b32 s30, s2, 7")
    k.e("s_lshr_b32 s31, s2, 3")
    k.e("s_lshl_b32 s30, s30, 2")
    k.e("s_and_b32 s32, s31, 3")
    k.e("s_add_u32 s30, s30, s32")
    k.e("s_lshl_b32 s29, s30, 6")
    k.e("s_lshr_b32 s31, s31, 2")
    k.e("s_lshl_b32 s28, s31, 6")
    k.srd(4, 'ws', WS_W2T, D * F * 2)
    k.srd(8, 'ws', WS_H, S * F * 2)
    k.srd(12, 'out', 0, S * D * 2)


def fix_p1_q(k, cfg, vlane):
    return None


CFG_P1 = dict(slot=1, name="p1_kernel", nwg=256, TI=64, TJ=128, WGI=1, WGJ=4, K=512, NST=5,
              ldP=D * 2, ldQ=D * 2, ldo=S * 2, mapping=map_p1,
              epilogue=dict(run=epi_plain_run), qrow_sgpr=64)
CFG_P2 = dict(slot=2, name="p2_kernel", nwg=256, TI=64, TJ=128, WGI=1, WGJ=4, K=2048, NST=5,
              ldP=S * 2, ldQ=S * 2, ldo=D * 2, mapping=map_p2,
              epilogue=dict(run=epi_plain_run))
CFG_P3 = dict(slot=3, name="p3_kernel", nwg=224, TI=128, TJ=128, WGI=2, WGJ=2, K=512, NST=4,
              ldP=D * 2, ldQ=D * 2, ldo=F * 2, mapping=map_p3,
              epilogue=dict(pre=bias_pre('b1', F * 2), mid=bias_mid, run=epi_p3_run))
CFG_P4 = dict(slot=4, name="p4_kernel", nwg=256, TI=64, TJ=64, WGI=2, WGJ=2, K=1792, NST=6,
              ldP=F * 2, ldQ=F * 2, ldo=D * 2, mapping=map_p4,
              epilogue=dict(pre=p4_pre, mid=p4_mid, run=epi_p4_run))


def build():
    kernels = []
    kernels.append(gen_ln("ln0_kernel", 'ln0'))
    kernels.append(gen_ln("comb_kernel", 'comb'))
    kernels.append(gen_ln("ln_kernel", 'ln'))
    for cfg in (CFG_P1, CFG_P2, CFG_P3, CFG_P4):
        v = os.environ.get("NST_" + cfg['name'][:2].upper())
        if v:
            cfg['NST'] = int(v)
        kernels.append(gen_gemm(cfg))
    kd = {kk.name: kk for kk in kernels}

    def L(n, grid):
        kk = kd[n]
        return f"; @launch kernel={n} grid=({grid},1,1) block=(256,1,1) lds={kk.lds}"
    launches = [
        L("ln0_kernel", S // 4 + 112),
        L("p1_kernel", 256), L("p2_kernel", 256), L("comb_kernel", S // 4),
        L("p3_kernel", 224), L("p4_kernel", 256), L("ln_kernel", S // 4),
        L("p1_kernel", 256), L("p2_kernel", 256), L("comb_kernel", S // 4),
        L("p3_kernel", 224), L("p4_kernel", 256),
    ]
    ref = open(f"cdna_kernels/{NAME}.s.ref").read().splitlines()
    head = [l for l in ref if l.startswith(";") and "@launch" not in l]
    out = head + launches
    out.append('.amdgcn_target "amdgcn-amd-amdhsa--gfx950"')
    out.append(".text")
    kds = []
    for kk in kernels:
        body, d = kk.text()
        out += body
        kds += d
    out.append('.section .rodata,"a"')
    for i in range(0, len(kds), 10):
        out.append(".p2align 6")
        out += kds[i:i + 10]
    return "\n".join(out) + "\n"


if __name__ == "__main__":
    txt = build()
    path = sys.argv[1] if len(sys.argv) > 1 else f"cdna_kernels/{NAME}.s"
    open(path, "w").write(txt)
    print("wrote", path, len(txt), "bytes")
```
